```python
import torch

def _softmax(x, axis=-1):
    return torch.softmax(x, dim=axis)

def _gelu(x):
    return torch.nn.functional.gelu(x, approximate='tanh')

def _silu(x):
    return torch.nn.functional.silu(x)

def _sigmoid(x):
    return torch.sigmoid(x)

def _layernorm(x, axis=-1, eps=1e-05):
    m = x.mean(dim=axis, keepdim=True)
    v = x.var(dim=axis, keepdim=True, unbiased=False)
    return (x - m) / torch.sqrt(v + eps)

def _scatter_add(tgt, idx, src, axis=0):
    return tgt.clone().index_add_(axis, idx, src)

def _segment_sum(src, seg, n):
    out = torch.zeros((n,) + src.shape[1:], dtype=src.dtype)
    return out.index_add_(0, seg, src)

def _pad(x, pw):
    flat = tuple((v for pair in reversed(pw) for v in pair))
    return torch.nn.functional.pad(x, flat)
kernel_name = 'adaLN_cond__sliding_local_dilated__mixer_channel_mlp__prompt'

def setup_inputs():

    _w = lambda a: (lambda t: t.to(torch.bfloat16) if t.is_floating_point() else t)(torch.as_tensor(a))

    def _A_setup():
        B, S, D = (1, 2048, 448)
        return {'x': _w((lambda *s: torch.randn(*s, dtype=torch.bfloat16) * 0.05)(B, S, D)), 'wqkv': _w((lambda *s: torch.randn(*s, dtype=torch.bfloat16) * 0.05)(D, 3 * D)), 'wo': _w((lambda *s: torch.randn(*s, dtype=torch.bfloat16) * 0.05)(D, D))}
    _A_in = _A_setup()

    def _B_setup():
        B, S, D, F = (1, 2048, 448, 1792)
        return {'x': _w((lambda *s: torch.randn(*s, dtype=torch.bfloat16) * 0.05)(B, S, D)), 'w1': _w((lambda *s: torch.randn(*s, dtype=torch.bfloat16) * 3.2)(D, F) * D ** (-0.5)), 'b1': _w((lambda *s: torch.randn(*s, dtype=torch.bfloat16) * 1.6)(F)), 'w2': _w((lambda *s: torch.randn(*s, dtype=torch.bfloat16) * 0.2)(F, D) * F ** (-0.5)), 'b2': _w((lambda *s: torch.randn(*s, dtype=torch.bfloat16) * 0.4)(D))}
    _B_in = _B_setup()
    return {'A_x': _A_in['x'], 'A_wqkv': _A_in['wqkv'], 'A_wo': _A_in['wo'], 'B_x': _B_in['x'], 'B_w1': _B_in['w1'], 'B_b1': _B_in['b1'], 'B_w2': _B_in['w2'], 'B_b2': _B_in['b2'], 'c': _w((lambda *s: torch.randn(*s, dtype=torch.bfloat16) * 0.1)(1, 448) * 8.0), 'w_mod': _w((lambda *s: torch.randn(*s, dtype=torch.bfloat16) * 0.1)(448, 6 * 448) * 448 ** (-0.5) * 8.0)}

def reference(A_x, A_wqkv, A_wo, B_x, B_w1, B_b1, B_w2, B_b2, c, w_mod):

    def _A_ref(x, wqkv, wo):
        B, S, D = x.shape
        H = 16
        Dh = D // H
        W, dil = (8, 2)
        qkv = (lambda x, *d: x.permute(*d))((x @ wqkv).reshape(B, S, 3, H, Dh), 2, 0, 3, 1, 4)
        q, k, v = (qkv[0], qkv[1], qkv[2])
        scale = Dh ** (-0.5)
        pos = torch.arange(S)
        off = torch.arange(W) * dil
        idx = pos[:, None] - off[None, :]
        mask = idx >= 0
        idx_c = torch.where(mask, idx, 0).reshape(-1)
        kg = k[:, :, idx_c, :].reshape(B, H, S, W, Dh)
        vg = v[:, :, idx_c, :].reshape(B, H, S, W, Dh)
        logits = torch.einsum('bhsd,bhswd->bhsw', q, kg) * scale
        logits = torch.where(mask[None, None, :, :], logits, -1000000000.0)
        attn = _softmax(logits, axis=-1)
        o = torch.einsum('bhsw,bhswd->bhsd', attn, vg)
        return (lambda x, *d: x.permute(*d))(o, 0, 2, 1, 3).reshape(B, S, D) @ wo

    def _B_ref(x, w1, b1, w2, b2):
        y = _layernorm(x, axis=-1)
        h = _gelu(torch.einsum('bsd,df->bsf', y, w1) + b1)
        return torch.einsum('bsf,fd->bsd', h, w2) + b2
    x = A_x
    mod = (_silu(c) @ w_mod).reshape(c.shape[0], 6, 1, -1)
    sa, ca, ga, sb, cb, gb = (mod[:, 0].clone(), mod[:, 1].clone(), mod[:, 2].clone(), mod[:, 3].clone(), mod[:, 4].clone(), mod[:, 5].clone())
    h = _layernorm(x, axis=-1) * (1 + ca) + sa
    x = x + ga * _A_ref(h, A_wqkv, A_wo)
    h = _layernorm(x, axis=-1) * (1 + cb) + sb
    x = x + gb * _B_ref(h, B_w1, B_b1, B_w2, B_b2)
    return x
```

```python
import sys
S, D, F = 2048, 448, 1792
WS_SC   = 0x0000000
WS_MOD  = 0x0010000
WS_H    = 0x0100000
WS_QKV  = 0x0800000
WS_O    = 0x1400000
WS_ATT  = 0x1800000
WS_X1   = 0x1c00000
WS_Y    = 0x2000000
WS_G    = 0x2400000
WS_M    = 0x3400000

class K:
    def __init__(s): s.hdr=[]; s.body=['.amdgcn_target "amdgcn-amd-amdhsa--gfx950"', '.text']; s.desc=['.section .rodata,"a"']
    def start(s, name, grid, block, lds=0, vg=128):
        s.hdr.append(f"; @launch kernel={name}_kernel grid=({grid},1,1) block=({block},1,1) lds={lds}")
        s.name=name
        s.body += f""".globl {name}_kernel
.p2align 8
.type {name}_kernel,@function
{name}_kernel:
    s_cmp_ge_u32 s2, {grid}
    s_cbranch_scc0 L_go_{name}
    s_endpgm
L_go_{name}:""".splitlines()
        s.desc += f""".p2align 6
.amdhsa_kernel {name}_kernel
  .amdhsa_next_free_vgpr {vg}
  .amdhsa_next_free_sgpr 102
  .amdhsa_accum_offset {vg}
  .amdhsa_group_segment_fixed_size 0
  .amdhsa_kernarg_size 104
  .amdhsa_user_sgpr_count 2
  .amdhsa_user_sgpr_kernarg_segment_ptr 1
  .amdhsa_system_sgpr_workgroup_id_x 1
  .amdhsa_float_denorm_mode_32 3
.end_amdhsa_kernel""".splitlines()
    def A(s, t): s.body += t.splitlines()
    def srd(s, r, slot, size):
        s.A(f"""    s_load_dwordx2 s[{r}:{r+1}], s[0:1], {slot*8}
    s_waitcnt lgkmcnt(0)
    s_mov_b32 s{r+2}, {size}
    s_mov_b32 s{r+3}, 0x20000""")
    def text(s): return "\n".join(s.hdr + s.body + s.desc) + "\n"

def wave_sum(k, v, tmp):
    for off in (0x041F, 0x081F, 0x101F, 0x201F, 0x401F):
        k.A(f"    ds_swizzle_b32 v{tmp}, v{v} offset:{off}\n    s_waitcnt lgkmcnt(0)\n    v_add_f32 v{v}, v{v}, v{tmp}")
    k.A(f"    v_mov_b32 v{tmp}, v{v}\n    s_nop 1\n    v_permlane32_swap_b32 v{tmp}, v{v}\n    s_nop 1\n    v_add_f32 v{v}, v{v}, v{tmp}")

def ln7(k, r0):
    k.A(f"    v_mov_b32 v40, 0")
    for i in range(7): k.A(f"    v_add_f32 v40, v40, v{r0+i}")
    wave_sum(k, 40, 41)
    k.A(f"    v_mul_f32 v40, {hex(fl(1.0/448))}, v40\n    v_mov_b32 v42, 0")
    for i in range(7): k.A(f"    v_sub_f32 v{r0+i}, v{r0+i}, v40\n    v_fmac_f32 v42, v{r0+i}, v{r0+i}")
    wave_sum(k, 42, 41)
    k.A(f"    v_mul_f32 v42, {hex(fl(1.0/448))}, v42\n    v_add_f32 v42, {hex(fl(1e-5))}, v42\n    v_rsq_f32 v42, v42\n    s_nop 0")
    for i in range(7): k.A(f"    v_mul_f32 v{r0+i}, v{r0+i}, v42")

import struct
def fl(x): return struct.unpack("<I", struct.pack("<f", x))[0]

def gemm(k, name, a_off, b_slot, Kd, N, c_off, rows, gelu_bias_slot=None):
    nb = N // 64
    grid = nb * (rows // 8)
    k.start(name, grid, 64, vg=64)
    k.srd(4, 12, 0x10000000)
    k.srd(8, b_slot, Kd*N*2)
    magic = -(-(1 << 32) // nb)
    k.A(f"""    s_mov_b32 s12, {magic}
    s_mul_hi_u32 s13, s2, s12
    s_mul_i32 s14, s13, {nb}
    s_sub_u32 s14, s2, s14
    s_lshl_b32 s15, s14, 6
    v_add_u32 v1, s15, v0              ; n
    v_lshlrev_b32 v2, 1, v1
    s_mul_i32 s16, s13, {8*Kd*4}
    s_add_u32 s16, s16, {a_off}
    s_add_u32 s18, s4, s16
    s_addc_u32 s19, s5, 0
    s_mov_b32 s20, 0
    s_mov_b32 s21, {Kd//8}""")
    for r in range(8): k.A(f"    v_mov_b32 v{8+r}, 0")
    k.A(f"L_k_{name}:")
    for r in range(8): k.A(f"    s_load_dwordx8 s[{32+8*r}:{39+8*r}], s[18:19], {r*Kd*4}")
    for j in range(8): k.A(f"    buffer_load_ushort v{16+j}, v2, s[8:11], s20 offen\n    s_add_u32 s20, s20, {N*2}")
    k.A("    s_waitcnt vmcnt(0) lgkmcnt(0)")
    for j in range(8):
        k.A(f"    v_lshlrev_b32 v{16+j}, 16, v{16+j}")
        for r in range(8): k.A(f"    v_fmac_f32 v{8+r}, s{32+8*r+j}, v{16+j}")
    k.A(f"""    s_add_u32 s18, s18, 32
    s_addc_u32 s19, s19, 0
    s_sub_u32 s21, s21, 1
    s_cmp_lg_u32 s21, 0
    s_cbranch_scc1 L_k_{name}""")
    if gelu_bias_slot is not None:
        k.srd(24, gelu_bias_slot, N*2)
        k.A("    buffer_load_ushort v16, v2, s[24:27], 0 offen\n    s_waitcnt vmcnt(0)\n    v_lshlrev_b32 v16, 16, v16")
        import math
        c1 = -2*math.sqrt(2/math.pi)*math.log2(math.e); c2 = c1*0.044715
        for r in range(8):
            k.A(f"""    v_add_f32 v{8+r}, v{8+r}, v16
    v_mul_f32 v17, v{8+r}, v{8+r}
    v_mov_b32 v18, {hex(fl(c1))}
    v_fmac_f32 v18, {hex(fl(c2))}, v17
    v_mul_f32 v18, v18, v{8+r}
    v_exp_f32 v18, v18
    s_nop 0
    v_add_f32 v18, 1.0, v18
    v_rcp_f32 v18, v18
    s_nop 0
    v_mul_f32 v{8+r}, v{8+r}, v18""")
    k.A(f"""    s_mul_i32 s16, s13, {8*N*4}
    s_add_u32 s16, s16, {c_off}
    v_lshlrev_b32 v2, 2, v1""")
    for r in range(8): k.A(f"    buffer_store_dword v{8+r}, v2, s[4:7], s16 offen\n    s_add_u32 s16, s16, {N*4}")
    k.A("    s_waitcnt vmcnt(0)\n    s_endpgm")

def load7_bf16(k, r0, srd, soff):
    for i in range(7): k.A(f"    buffer_load_ushort v{r0+i}, v1, s[{srd}:{srd+3}], {soff} offen offset:{i*128}")
    k.A("    s_waitcnt vmcnt(0)")
    for i in range(7): k.A(f"    v_lshlrev_b32 v{r0+i}, 16, v{r0+i}")
def load7_f32(k, r0, soff):
    for i in range(7): k.A(f"    buffer_load_dword v{r0+i}, v2, s[4:7], {soff} offen offset:{i*256}")
    k.A("    s_waitcnt vmcnt(0)")
def store7_f32(k, r0, soff):
    for i in range(7): k.A(f"    buffer_store_dword v{r0+i}, v2, s[4:7], {soff} offen offset:{i*256}")
def rowpro(k):
    k.srd(4, 12, 0x10000000)
    k.A("    v_lshlrev_b32 v1, 1, v0\n    v_lshlrev_b32 v2, 2, v0\n    s_mul_i32 s20, s2, 896\n    s_mul_i32 s21, s2, 1792")
def modv(k, r0, idx):
    k.A(f"    s_mov_b32 s22, {WS_MOD + idx*448*4}")
    load7_f32(k, r0, "s22")

def build(probe=None):
    k = K()
    if probe: probe(k)
    k.start("silu", 1, 64); rowpro(k); k.srd(8, 8, 896)
    load7_bf16(k, 8, 8, 0)
    for i in range(7):
        k.A(f"""    v_mul_f32 v20, {hex(fl(-1.4426950408889634))}, v{8+i}
    v_exp_f32 v20, v20
    s_nop 0
    v_add_f32 v20, 1.0, v20
    v_rcp_f32 v20, v20
    s_nop 0
    v_mul_f32 v{8+i}, v{8+i}, v20""")
    for r in range(8):
        k.A(f"    s_mov_b32 s22, {WS_SC + r*1792}"); store7_f32(k, 8, "s22")
    k.A("    s_waitcnt vmcnt(0)\n    s_endpgm")
    gemm(k, "mod", WS_SC, 9, 448, 2688, WS_MOD, 8)
    k.start("ln1", S, 64); rowpro(k); k.srd(8, 0, S*896)
    load7_bf16(k, 8, 8, "s20"); ln7(k, 8); modv(k, 16, 0); modv(k, 24, 1)
    for i in range(7): k.A(f"    v_add_f32 v{24+i}, 1.0, v{24+i}\n    v_fma_f32 v{8+i}, v{8+i}, v{24+i}, v{16+i}")
    k.A(f"    s_add_u32 s22, s21, {WS_H}"); store7_f32(k, 8, "s22")
    k.A("    s_waitcnt vmcnt(0)\n    s_endpgm")
    gemm(k, "qkv", WS_H, 1, 448, 1344, WS_QKV, S)
    k.start("att", S*16//64, 64, vg=128); k.srd(4, 12, 0x10000000)
    k.A(f"""    s_lshl_b32 s12, s2, 6
    v_add_u32 v1, s12, v0
    v_lshrrev_b32 v2, 4, v1            ; token
    v_and_b32 v3, 15, v1               ; head
    v_mul_u32_u24 v4, 112, v3
    v_mul_u32_u24 v5, {1344*4}, v2
    v_add_u32 v5, v5, v4
    s_mov_b32 s13, {WS_QKV}
    s_mov_b32 s14, {WS_QKV + 448*4}
    s_mov_b32 s15, {WS_QKV + 896*4}""")
    for i in range(7): k.A(f"    buffer_load_dwordx4 v[{16+4*i}:{19+4*i}], v5, s[4:7], s13 offen offset:{16*i}")
    sc = 28 ** -0.5 * 1.4426950408889634
    for w in range(8):
        k.A(f"""    v_subrev_u32 v6, {2*w}, v2
    v_max_i32 v7, 0, v6
    v_mul_u32_u24 v7, {1344*4}, v7
    v_add_u32 v7, v7, v4""")
        for i in range(7): k.A(f"    buffer_load_dwordx4 v[{48+4*i}:{51+4*i}], v7, s[4:7], s14 offen offset:{16*i}")
        k.A(f"    s_waitcnt vmcnt(0)\n    v_mov_b32 v{8+w}, 0")
        for i in range(28): k.A(f"    v_fmac_f32 v{8+w}, v{16+i}, v{48+i}")
        k.A(f"    v_mul_f32 v{8+w}, {hex(fl(sc))}, v{8+w}\n    v_cmp_gt_i32 vcc, 0, v6\n    v_mov_b32 v7, {hex(fl(-1e9))}\n    s_nop 1\n    v_cndmask_b32 v{8+w}, v{8+w}, v7, vcc")
    k.A("    v_mov_b32 v6, v8")
    for w in range(1, 8): k.A(f"    v_max_f32 v6, v6, v{8+w}")
    k.A("    v_mov_b32 v7, 0")
    for w in range(8): k.A(f"    v_sub_f32 v{8+w}, v{8+w}, v6\n    v_exp_f32 v{8+w}, v{8+w}\n    s_nop 0\n    v_add_f32 v7, v7, v{8+w}")
    k.A("    v_rcp_f32 v7, v7\n    s_nop 0")
    for w in range(8): k.A(f"    v_mul_f32 v{8+w}, v{8+w}, v7")
    for i in range(28): k.A(f"    v_mov_b32 v{16+i}, 0")
    for w in range(8):
        k.A(f"""    v_subrev_u32 v6, {2*w}, v2
    v_max_i32 v7, 0, v6
    v_mul_u32_u24 v7, {1344*4}, v7
    v_add_u32 v7, v7, v4""")
        for i in range(7): k.A(f"    buffer_load_dwordx4 v[{48+4*i}:{51+4*i}], v7, s[4:7], s15 offen offset:{16*i}")
        k.A(f"    s_waitcnt vmcnt(0)")
        for i in range(28): k.A(f"    v_fmac_f32 v{16+i}, v{8+w}, v{48+i}")
    k.A(f"    v_mul_u32_u24 v5, 1792, v2\n    v_add_u32 v5, v5, v4\n    s_mov_b32 s13, {WS_O}")
    for i in range(7): k.A(f"    buffer_store_dwordx4 v[{16+4*i}:{19+4*i}], v5, s[4:7], s13 offen offset:{16*i}")
    k.A("    s_waitcnt vmcnt(0)\n    s_endpgm")
    gemm(k, "wo", WS_O, 2, 448, 448, WS_ATT, S)
    k.start("ln2", S, 64); rowpro(k); k.srd(8, 0, S*896)
    load7_bf16(k, 8, 8, "s20")
    k.A(f"    s_add_u32 s23, s21, {WS_ATT}"); load7_f32(k, 16, "s23"); modv(k, 24, 2)
    for i in range(7): k.A(f"    v_fmac_f32 v{8+i}, v{16+i}, v{24+i}")
    k.A(f"    s_add_u32 s22, s21, {WS_X1}"); store7_f32(k, 8, "s22"); k.A("    s_waitcnt vmcnt(0)")
    ln7(k, 8); modv(k, 16, 3); modv(k, 24, 4)
    for i in range(7): k.A(f"    v_add_f32 v{24+i}, 1.0, v{24+i}\n    v_fma_f32 v{8+i}, v{8+i}, v{24+i}, v{16+i}")
    ln7(k, 8)
    k.A(f"    s_add_u32 s22, s21, {WS_Y}"); store7_f32(k, 8, "s22")
    k.A("    s_waitcnt vmcnt(0)\n    s_endpgm")
    gemm(k, "w1", WS_Y, 4, 448, 1792, WS_G, S, gelu_bias_slot=5)
    gemm(k, "w2", WS_G, 6, 1792, 448, WS_M, S)
    k.start("fin", S, 64); rowpro(k); k.srd(8, 7, 896); k.srd(12, 10, S*896)
    load7_bf16(k, 8, 8, 0)
    k.A(f"    s_add_u32 s23, s21, {WS_M}"); load7_f32(k, 16, "s23"); modv(k, 24, 5)
    k.A(f"    s_add_u32 s23, s21, {WS_X1}"); load7_f32(k, 32, "s23")
    for i in range(7):
        k.A(f"    v_add_f32 v{8+i}, v{8+i}, v{16+i}\n    v_fmac_f32 v{32+i}, v{8+i}, v{24+i}\n    v_cvt_pk_bf16_f32 v{32+i}, v{32+i}, v{32+i}")
        k.A(f"    buffer_store_short v{32+i}, v1, s[12:15], s20 offen offset:{i*128}")
    k.A("    s_waitcnt vmcnt(0)\n    s_endpgm")
    return k.text()

def mkprobe(slot, size, base, stride, n):
    def p(k):
        k.start("probe", 1, 64); k.srd(8, slot, size)
        k.A(f"""    v_mov_b32 v1, 0
    s_mov_b32 s12, {base}
    s_mov_b32 s13, {n}
L_probe:
    buffer_load_dword v2, v1, s[8:11], s12 offen
    s_waitcnt vmcnt(0)
    s_add_u32 s12, s12, {stride}
    s_sub_u32 s13, s13, 1
    s_cmp_lg_u32 s13, 0
    s_cbranch_scc1 L_probe
    s_endpgm""")
    return p
if __name__ == "__main__":
    open("naive0.s", "w").write(build())
    open("naive1.s", "w").write(build(mkprobe(3, S*896, 0, 1024, 1000)))
    open("naive2.s", "w").write(build(mkprobe(3, S*896, 0, 0, 1000)))
    open("naive3.s", "w").write(build(mkprobe(12, 0x10000000, 0x8000000, 1024, 1000)))
    open("naive4.s", "w").write(build(mkprobe(12, 0x10000000, 0xfe00000, 1024, 1000)))
    open("naive5.s", "w").write(build(mkprobe(9, 448*5376, 0, 1024, 1000)))
```

```python
import naive_gen as N
from naive_gen import *
def bwprobe(slot, size, base, per_wg, nwg=1024):
    def p(k):
        k.start("probe", nwg, 256); k.srd(8, slot, size)
        k.A(f"""    v_lshlrev_b32 v1, 4, v0
    s_mul_i32 s12, s2, {per_wg}
    s_add_u32 s12, s12, {base}
    s_mov_b32 s13, {per_wg//(4096*8)}
L_probe:""")
        for i in range(8):
            k.A(f"    buffer_load_dwordx4 v[{8+4*i}:{11+4*i}], v1, s[8:11], s12 offen\n    s_add_u32 s12, s12, 4096")
        k.A("""    s_waitcnt vmcnt(0)
    s_sub_u32 s13, s13, 1
    s_cmp_lg_u32 s13, 0
    s_cbranch_scc1 L_probe
    s_endpgm""")
    return p
def perturb(txt, delta, single=False):
    a = "    v_cvt_pk_bf16_f32 v32, v32, v32"
    if single:
        ins = f"    v_mov_b32 v50, 0\n    s_cmp_eq_u32 s2, 777\n    s_cselect_b32 s30, {hex(fl(delta))}, 0\n    v_writelane_b32 v50, s30, 5\n    v_add_f32 v32, v32, v50\n"
        return txt.replace(a, ins + a)
    for i in range(7):
        a = f"    v_cvt_pk_bf16_f32 v{32+i}, v{32+i}, v{32+i}"
        txt = txt.replace(a, f"    v_add_f32 v{32+i}, {hex(fl(delta))}, v{32+i}\n" + a)
    return txt
base = build()
open("nv_a.s","w").write(perturb(base, 0.004))
open("nv_b.s","w").write(perturb(base, 0.01))
open("nv_c.s","w").write(perturb(base, 0.03))
open("nv_d.s","w").write(perturb(base, 0.06, True))
open("nv_e.s","w").write(perturb(base, 0.12, True))
open("nv_f.s","w").write(perturb(base, 0.3, True))
open("nv_g.s","w").write(build(bwprobe(12, 0x10000000, 0x4000000, 131072)))
open("nv_h.s","w").write(build(bwprobe(12, 0x10000000, 0x4000000, 32768)))
```
